```python
import torch

def _softmax(x, axis=-1):
    return torch.softmax(x, dim=axis)
def _gelu(x):
    return torch.nn.functional.gelu(x, approximate="tanh")
def _silu(x):
    return torch.nn.functional.silu(x)
def _sigmoid(x):
    return torch.sigmoid(x)
def _layernorm(x, axis=-1, eps=1e-5):
    m = x.mean(dim=axis, keepdim=True)
    v = x.var(dim=axis, keepdim=True, unbiased=False)
    return (x - m) / torch.sqrt(v + eps)
def _scatter_add(tgt, idx, src, axis=0):
    return tgt.clone().index_add_(axis, idx, src)
def _segment_sum(src, seg, n):
    out = torch.zeros((n,) + src.shape[1:], dtype=src.dtype)
    return out.index_add_(0, seg, src)
def _pad(x, pw):
    flat = tuple(v for pair in reversed(pw) for v in pair)
    return torch.nn.functional.pad(x, flat)

kernel_name = 'concat_heads__gqa_block_cached__gqa_block_cached__decode'

def setup_inputs():

    _w = (lambda a: (lambda t: t.to(torch.bfloat16) if t.is_floating_point() else t)(torch.as_tensor(a)))
    def _A_setup():
        B, Sq, D = 2, 1, 1024
        Hq, Hkv, Sk, Dh = 32, 4, 32768, 128
        assert Hq % Hkv == 0, (Hq, Hkv)
        return {
            "x": _w((lambda *s: torch.randn(*s, dtype=torch.bfloat16) * 0.8)(B, Sq, D)),
            "k_cache": _w((lambda *s: torch.randn(*s, dtype=torch.bfloat16) * 0.8)(B, Hkv, Sk, Dh)),
            "v_cache": _w((lambda *s: torch.randn(*s, dtype=torch.bfloat16) * 0.05)(B, Hkv, Sk, Dh)),
            "wq": _w((lambda *s: torch.randn(*s, dtype=torch.bfloat16) * 0.8)(D, Hq * Dh) * (D ** -0.5)),
            "wo": _w((lambda *s: torch.randn(*s, dtype=torch.bfloat16) * 0.05)(Hq * Dh, D) * ((Hq * Dh) ** -0.5)),
        }
    _A_in = _A_setup()

    def _B_setup():
        B, Sq, D = 2, 1, 1024
        Hq, Hkv, Sk, Dh = 32, 4, 32768, 128
        assert Hq % Hkv == 0, (Hq, Hkv)
        return {
            "x": _w((lambda *s: torch.randn(*s, dtype=torch.bfloat16) * 0.8)(B, Sq, D)),
            "k_cache": _w((lambda *s: torch.randn(*s, dtype=torch.bfloat16) * 0.8)(B, Hkv, Sk, Dh)),
            "v_cache": _w((lambda *s: torch.randn(*s, dtype=torch.bfloat16) * 0.05)(B, Hkv, Sk, Dh)),
            "wq": _w((lambda *s: torch.randn(*s, dtype=torch.bfloat16) * 0.8)(D, Hq * Dh) * (D ** -0.5)),
            "wo": _w((lambda *s: torch.randn(*s, dtype=torch.bfloat16) * 0.05)(Hq * Dh, D) * ((Hq * Dh) ** -0.5)),
        }
    _B_in = _B_setup()

    return {
        "A_x": _A_in["x"],
        "A_k_cache": _A_in["k_cache"],
        "A_v_cache": _A_in["v_cache"],
        "A_wq": _A_in["wq"],
        "A_wo": _A_in["wo"],
        "B_x": _B_in["x"],
        "B_k_cache": _B_in["k_cache"],
        "B_v_cache": _B_in["v_cache"],
        "B_wq": _B_in["wq"],
        "B_wo": _B_in["wo"],
    }

def reference(A_x, A_k_cache, A_v_cache, A_wq, A_wo, B_x, B_k_cache, B_v_cache, B_wq, B_wo):
    def _A_ref(x, k_cache, v_cache, wq, wo):
        B, Sq, D = x.shape
        Hq, Dh = 32, 128
        Hkv = k_cache.shape[1]
        rep = Hq // Hkv
        q = (lambda x, *d: x.permute(*d))((x @ wq).reshape(B, Sq, Hq, Dh), 0, 2, 1, 3)
        k = (lambda x, n, axis: torch.repeat_interleave(x, n, dim=axis))(k_cache, rep, axis=1)
        v = (lambda x, n, axis: torch.repeat_interleave(x, n, dim=axis))(v_cache, rep, axis=1)
        scores = torch.einsum("bhqd,bhkd->bhqk", q, k) * (Dh ** -0.5)
        p = _softmax(scores, axis=-1)
        o = torch.einsum("bhqk,bhkd->bhqd", p, v)
        return (lambda x, *d: x.permute(*d))(o, 0, 2, 1, 3).reshape(B, Sq, Hq * Dh) @ wo

    def _B_ref(x, k_cache, v_cache, wq, wo):
        B, Sq, D = x.shape
        Hq, Dh = 32, 128
        Hkv = k_cache.shape[1]
        rep = Hq // Hkv
        q = (lambda x, *d: x.permute(*d))((x @ wq).reshape(B, Sq, Hq, Dh), 0, 2, 1, 3)
        k = (lambda x, n, axis: torch.repeat_interleave(x, n, dim=axis))(k_cache, rep, axis=1)
        v = (lambda x, n, axis: torch.repeat_interleave(x, n, dim=axis))(v_cache, rep, axis=1)
        scores = torch.einsum("bhqd,bhkd->bhqk", q, k) * (Dh ** -0.5)
        p = _softmax(scores, axis=-1)
        o = torch.einsum("bhqk,bhkd->bhqd", p, v)
        return (lambda x, *d: x.permute(*d))(o, 0, 2, 1, 3).reshape(B, Sq, Hq * Dh) @ wo

    a = _A_ref(A_x, A_k_cache, A_v_cache, A_wq, A_wo)
    b = _B_ref(B_x, B_k_cache, B_v_cache, B_wq, B_wo)
    return torch.concatenate([a, b], axis=-1)
```

```python
import re

_REG = re.compile(r"\b([vas])\[(\d+):(\d+)\]|\b([vas])(\d+)\b|\b(vcc|exec|m0)\b")
TRANS = ("v_exp_f32", "v_log_f32", "v_rcp_f32", "v_rsq_f32", "v_sqrt_f32", "v_sin_f32", "v_cos_f32")


def regs_of(tok):
    out = []
    for m in _REG.finditer(tok):
        if m.group(1):
            out += [(m.group(1), i) for i in range(int(m.group(2)), int(m.group(3)) + 1)]
        elif m.group(4):
            out.append((m.group(4), int(m.group(5))))
        else:
            out.append((m.group(6), 0))
    return out


class Asm:
    def __init__(self):
        self.lines = []
        self.pos = 0
        self.rec = {}
        self.vm = []
        self.vm_done = 0
        self.cond = []
        self.nops_added = 0

    def raw(self, s):
        self.lines.append(s)

    def label(self, name):
        self.lines.append(name + ":")

    def comment(self, s):
        self.lines.append("; " + s)

    def _need(self, tag, regs, dist):
        worst = 0
        for r in regs:
            p = self.rec.get((tag, r))
            if p is not None:
                have = self.pos - p - 1
                if have < dist:
                    worst = max(worst, dist - have)
        return worst

    def __call__(self, text):
        text = text.strip()
        mn = text.split()[0]
        ops = text[len(mn):]
        ops_l = [o.strip() for o in re.split(r",(?![^\[]*\])", ops)] if ops.strip() else []
        pad = 0
        wr, rd = [], []
        kind = "s"
        if mn.startswith("v_mfma"):
            kind = "mfma"
            wr = regs_of(ops_l[0]); a = regs_of(ops_l[1]); b = regs_of(ops_l[2]); c = regs_of(ops_l[3].split()[0])
            pad = max(pad, self._need("valu", a + b + c, 2))
            pad = max(pad, self._need("mfma", a + b, 8))
            if c and c != wr:
                pad = max(pad, self._need("mfma", c, 6))
            elif c:
                for r in c:
                    t = self.rec.get(("mfma_t", r))
                    if t is not None and t != tuple(wr):
                        pad = max(pad, self._need("mfma", [r], 6))
            if not c:
                pad = max(pad, self._need("mfma", wr, 6))
            rd = a + b + c
        elif mn.startswith("v_"):
            kind = "valu"
            if mn.startswith("v_cmp"):
                wr = regs_of(ops_l[0]); rd = sum((regs_of(o) for o in ops_l[1:]), [])
            elif mn.startswith("v_permlane"):
                wr = regs_of(ops_l[0]) + regs_of(ops_l[1]); rd = list(wr)
                pad = max(pad, self._need("valu", rd, 2))
            else:
                wr = regs_of(ops_l[0]); rd = sum((regs_of(o.split(" row_")[0].split(" quad_")[0].split(" op_sel")[0]) for o in ops_l[1:]), [])
                if "_dpp" in mn or "fmac" in mn:
                    rd = rd + wr
            if "_dpp" in mn:
                src0 = regs_of(ops_l[1].split(" row_")[0].split(" quad_")[0])
                pad = max(pad, self._need("valu", src0, 2))
            if mn.startswith("v_readfirstlane") or mn.startswith("v_readlane"):
                pad = max(pad, self._need("valu", [r for r in rd if r[0] == "v"], 1))
            vr = [r for r in rd + wr if r[0] in "va"]
            pad = max(pad, self._need("mfma", vr, 8))
            pad = max(pad, self._need("mfmac", [r for r in wr if r[0] in "va"], 3))
            pad = max(pad, self._need("vsgpr", [r for r in rd if r[0] in ("s", "vcc")], 2))
            if not mn.startswith(TRANS):
                pad = max(pad, self._need("trans", rd, 1))
            pad = max(pad, self._need("stdata", [r for r in wr if r[0] in "va"], 2))
        elif mn.startswith(("buffer_", "global_", "ds_")):
            kind = "mem"
            allr = sum((regs_of(o) for o in ops_l), [])
            vr = [r for r in allr if r[0] in "va"]
            pad = max(pad, self._need("mfma", vr, 8))
            pad = max(pad, self._need("vsgpr", [r for r in allr if r[0] == "s"], 5))
            if "load" in mn or mn.startswith("ds_read"):
                wr = regs_of(ops_l[0])
                pad = max(pad, self._need("stdata", wr, 1))
        if pad:
            self.nops_added += 1
            self._nop(pad)
        self.lines.append("    " + text)
        here = self.pos
        if mn == "s_nop":
            self.pos += int(ops_l[0], 0) + 1
        else:
            self.pos += 1
        if kind == "mfma":
            for r in wr:
                self.rec[("mfma", r)] = here
                self.rec[("mfma_t", r)] = tuple(wr)
                self.rec.pop(("valu", r), None)
            for r in regs_of(ops_l[3].split()[0]):
                self.rec[("mfmac", r)] = here
        elif kind == "valu":
            for r in wr:
                if r[0] in "va":
                    self.rec[("valu", r)] = here
                    self.rec.pop(("mfma_t", r), None)
                    if mn.startswith(TRANS):
                        self.rec[("trans", r)] = here
                    else:
                        self.rec.pop(("trans", r), None)
                else:
                    self.rec[("vsgpr", r)] = here
        elif kind == "mem":
            if "store" in mn and ("x4" in mn or "x3" in mn):
                data = regs_of(ops_l[0]) if mn.startswith("buffer_") else regs_of(ops_l[1])
                for r in data:
                    self.rec[("stdata", r)] = here

    def _nop(self, n):
        while n > 0:
            k = min(n, 16)
            self.lines.append(f"    s_nop {k-1}")
            self.pos += k
            n -= k

    def cond_begin(self):
        self.cond.append(self.pos)

    def cond_end(self):
        p0 = self.cond.pop()
        skipped = self.pos - p0
        for k, v in list(self.rec.items()):
            if k[0] != "mfma_t" and v < p0:
                self.rec[k] = v + skipped

    def vmem(self, name, text):
        self(text)
        self.vm.append(name)

    def wait_vm(self, *names, extra=""):
        idx = max(len(self.vm) - 1 - self.vm[::-1].index(n) for n in names)
        if idx < self.vm_done:
            return
        n = len(self.vm) - 1 - idx
        n = min(n, 63)
        self(f"s_waitcnt vmcnt({n}){extra}")
        self.vm_done = max(self.vm_done, len(self.vm) - n)

    def wait_vm_all(self):
        self("s_waitcnt vmcnt(0)")
        self.vm_done = len(self.vm)

    def text(self):
        return "\n".join(self.lines) + "\n"
```

```python
import struct, sys, math
from asmlib import Asm

NAME = "concat_heads__gqa_block_cached__gqa_block_cached__decode_kernel"
HEADER = open("concat_heads__gqa_block_cached__gqa_block_cached__decode.s.ref").read().split("; Override launch")[0]

OFF_Q, OFF_ML, OFF_O, OFF_P, WS_USED = 0, 0x8000, 0x100000, 0x200000, 0x400000
STAMP_OFF = 0x10000000
LQ, LM, LL, LO = 0, 4096, 4608, 8192
LO_H, LO_W = 528, 4224
LDS_BYTES = 8192 + 4 * LO_W

def f32(x):
    return struct.unpack("<I", struct.pack("<f", x))[0]

def gen(stamps=False, N1=12, F1=36, F2=48, spin_max=1 << 16, MLT=8, MLC=10, pref=False):
    a = Asm()
    a.raw(HEADER.rstrip("\n"))
    a.raw(f"; @launch grid=(256,1,1) block=(256,1,1) lds={LDS_BYTES}")
    a.raw('.amdgcn_target "amdgcn-amd-amdhsa--gfx950"')
    a.raw(".text"); a.raw(f".globl {NAME}"); a.raw(".p2align 8"); a.raw(f".type {NAME},@function"); a.label(NAME)

    nst = [0]
    def stamp():
        if stamps:
            a(f"s_memrealtime s[{78 + 2*nst[0]}:{79 + 2*nst[0]}]")
            nst[0] += 1

    SRD_K, SRD_V, SRD_WQ, SRD_WO, SRD_X, SRD_WS, SRD_OUT = ("s[28:31]", "s[32:35]", "s[36:39]", "s[40:43]", "s[44:47]", "s[48:51]", "s[52:55]")
    SEL_LO, SEL_HI, SC = "s60", "s61", "s62"
    vQ = 16; vD = 24; vF = 40; vX = 56; vS = 64; vR = 128

    a("s_cmp_ge_u32 s2, 0x100")
    a("s_cbranch_scc1 L_end")
    a("s_lshr_b32 s3, s2, 7")
    a("s_mul_i32 s4, s3, 40")
    a("s_load_dwordx8 s[8:15], s[0:1], s4")
    a("s_add_u32 s5, s4, 32")
    a("s_load_dwordx2 s[16:17], s[0:1], s5")
    a("s_load_dwordx4 s[20:23], s[0:1], 80")
    a("s_load_dwordx2 s[24:25], s[0:1], 96")
    stamp()
    a("v_and_b32 v1, 63, v0")
    a("v_lshrrev_b32 v6, 6, v0")
    a("v_lshrrev_b32 v7, 4, v1")
    a("v_readfirstlane_b32 s26, v6")
    a("s_bfe_u32 s72, s2, 0x10006")
    a("s_bfe_u32 s59, s2, 0x20004")
    a("s_and_b32 s27, s2, 15")
    a("s_lshl_b32 s27, s27, 1")
    a("s_add_u32 s27, s27, s72")
    a("v_lshlrev_b32 v4, 21, v6")
    a("v_bfe_u32 v8, v1, 2, 2")
    a("v_lshl_or_b32 v4, v8, 18, v4")
    a("v_lshl_or_b32 v4, v7, 16, v4")
    a("v_and_b32 v9, 3, v1")
    a("v_lshl_or_b32 v4, v9, 4, v4")
    a("v_lshlrev_b32 v5, 9, v6")
    a("v_lshl_or_b32 v5, v9, 6, v5")
    a("v_lshl_or_b32 v5, v7, 4, v5")
    a("v_bfe_u32 v10, v1, 2, 1")
    a("v_lshl_or_b32 v5, v10, 11, v5")
    a("s_lshl_b32 s4, s59, 11")
    a("s_lshl_b32 s5, s27, 6")
    a("s_add_u32 s4, s4, s5")
    a("s_mov_b32 s38, 8380480"); a("s_mov_b32 s39, 0x20000")
    a("s_mov_b32 s46, 4096"); a("s_mov_b32 s47, 0x20000")
    a("s_mov_b32 s58, 0")
    a("s_waitcnt lgkmcnt(0)")
    a("s_add_u32 s36, s14, s4"); a("s_addc_u32 s37, s15, 0")
    a("s_mov_b32 s44, s8"); a("s_mov_b32 s45, s9")
    for tau in range(2):
        for i in range(8):
            r = vR + (tau * 8 + i) * 4
            a.vmem(f"wq{tau}_{i}", f"buffer_load_dwordx4 v[{r}:{r+3}], v4, {SRD_WQ}, s58 offen nt")
            if i < 7:
                a("s_addk_i32 s58, 0x2000")
            elif tau == 0:
                a("s_mov_b32 s58, 0x100000")
        if tau == 0:
            a.vmem("x0", f"buffer_load_dwordx4 v[{vX}:{vX+3}], v5, {SRD_X}, 0 offen")
            a.vmem("x1", f"buffer_load_dwordx4 v[{vX+4}:{vX+7}], v5, {SRD_X}, 0 offen offset:256")
    a("s_and_b32 s4, s2, 127"); a("s_lshl_b32 s4, s4, 19")
    a("s_add_u32 s28, s10, s4"); a("s_addc_u32 s29, s11, 0"); a("s_mov_b32 s30, 0x80000"); a("s_mov_b32 s31, 0x20000")
    a("s_add_u32 s32, s12, s4"); a("s_addc_u32 s33, s13, 0"); a("s_mov_b32 s34, 0x80000"); a("s_mov_b32 s35, 0x20000")
    a("s_mov_b32 s48, s24"); a("s_mov_b32 s49, s25"); a(f"s_mov_b32 s50, {WS_USED}"); a("s_mov_b32 s51, 0x20000")
    a("s_lshl_b32 s56, s26, 12")
    a("s_mov_b32 s57, s56")
    a("v_bfe_u32 v2, v1, 1, 1")
    a("v_lshlrev_b32 v2, 10, v2")
    a("v_lshl_or_b32 v2, v8, 8, v2")
    a("v_lshl_or_b32 v2, v7, 5, v2")
    a("v_and_b32 v10, 1, v1")
    a("v_lshl_or_b32 v2, v10, 4, v2")
    a("v_lshlrev_b32 v3, 4, v1")

    kq = [0]
    def kload():
        k = kq[0]; kq[0] += 1
        assert k < 128
        r = (k % 64) * 4
        imm = ((k >> 1) & 1) * 2048 + (k & 1) * 128
        a.vmem(f"K{k}", f"buffer_load_dwordx4 a[{r}:{r+3}], v2, {SRD_K}, s56 offen offset:{imm} nt")
        if k % 4 == 3:
            a("s_addk_i32 s56, 0x4000")
    vq = [0]
    def vload():
        v = vq[0]; vq[0] += 1
        T, i = v >> 3, v & 7
        r = vR + ((T % 4) * 8 + i) * 4
        if T < 16:
            a.vmem(f"V{v}", f"buffer_load_dwordx4 v[{r}:{r+3}], v3, {SRD_V}, s57 offen offset:{(v & 3) * 1024} nt")
            if v % 4 == 3:
                a("s_addk_i32 s57, 0x4000")
        else:
            tau = T - 16
            so = ["0", "s68", "s69", "s70"][i & 3]
            a.vmem(f"V{v}", f"buffer_load_dwordx4 v[{r}:{r+3}], v4, {SRD_WO}, {so} offen offset:{(i >> 2) * 2048 + tau * 256} nt")

    for _ in range(4):
        kload()
    a("s_mov_b32 s60, 0x05040100"); a("s_mov_b32 s61, 0x07060302")
    a(f"s_mov_b32 s62, {f32(128 ** -0.5 * math.log2(math.e)):#x}")
    a("s_lshl_b32 s73, s2, 12"); a(f"s_add_u32 s73, s73, {OFF_O}")
    a("s_lshl_b32 s74, s2, 13"); a(f"s_add_u32 s74, s74, {OFF_P}")
    a("s_add_u32 s75, s74, 4096")
    a("s_lshl_b32 s76, s2, 6"); a(f"s_add_u32 s76, s76, {OFF_ML}")
    a("s_cmp_lg_u32 s26, 0")
    a("s_cbranch_scc1 L_nosent")
    a.cond_begin()
    for r in range(4):
        a(f"v_mov_b32 v{vD + r}, -1")
    for so in ("s73", "s74", "s75"):
        for j in range(4):
            a(f"buffer_store_dwordx4 v[{vD}:{vD+3}], v3, {SRD_WS}, {so} offen offset:{j*1024} sc1")
    a("s_mov_b64 exec, 15")
    a(f"buffer_store_dwordx4 v[{vD}:{vD+3}], v3, {SRD_WS}, s76 offen sc1")
    a("s_mov_b64 exec, -1")
    a.cond_end()
    a.label("L_nosent")
    while kq[0] < N1 - 4:
        kload()

    def tile(slot0, B, accs, first, between=None):
        def perms(tp, F):
            for half, sel in ((0, SEL_LO), (1, SEL_HI)):
                for jj in range(4):
                    lo = slot0 + (2 * jj) * 4 + tp
                    hi = slot0 + (2 * jj + 1) * 4 + tp
                    a(f"v_perm_b32 v{F + half*4 + jj}, v{hi}, v{lo}, {sel}")
        def mf(tp, F):
            for half in range(2):
                t = 2 * tp + half
                c = "0" if first else accs[t]
                a(f"v_mfma_f32_16x16x32_bf16 {accs[t]}, v[{F+half*4}:{F+half*4+3}], {B}, {c}")
        F0, F1_ = vF, vF + 8
        perms(0, F0); perms(1, F1_)
        mf(0, F0); perms(2, F0)
        mf(1, F1_); perms(3, F1_)
        if between: between()
        mf(2, F0)
        mf(3, F1_)

    qacc = [f"v[{vS + 4*t}:{vS + 4*t + 3}]" for t in range(8)]
    a.wait_vm("x1")
    tile(vR, f"v[{vX}:{vX+3}]", qacc, True)
    for _ in range(4):
        kload()
    a.wait_vm("wq1_7")
    tile(vR + 32, f"v[{vX+4}:{vX+7}]", qacc, False)
    a("v_lshl_add_u32 v10, v6, 2, v7")
    a("v_lshlrev_b32 v10, 8, v10")
    a("v_bfe_u32 v11, v1, 2, 1")
    a("v_lshl_add_u32 v10, v11, 7, v10")
    m = 0
    for g in range(4):
        for bb in range(2):
            m |= 1 << (16 * g + 4 * bb + g)
    a(f"s_mov_b32 exec_lo, {m & 0xffffffff:#x}"); a(f"s_mov_b32 exec_hi, {m >> 32:#x}")
    for t in range(8):
        a(f"ds_write_b128 v10, {qacc[t]} offset:{LQ + t*16}")
    a("s_mov_b64 exec, -1")
    a("s_waitcnt lgkmcnt(0)")
    a("s_barrier")
    a("s_cmp_lg_u32 s26, 0")
    a("s_cbranch_scc1 L_noq")
    a.cond_begin()
    a("v_lshrrev_b32 v10, 5, v1"); a("v_lshlrev_b32 v10, 7, v10")
    a("v_and_b32 v11, 7, v1"); a("v_lshl_add_u32 v10, v11, 4, v10")
    a("v_bfe_u32 v11, v1, 3, 2"); a("v_lshl_add_u32 v10, v11, 2, v10")
    for s in range(16):
        a(f"ds_read_b32 v{vD + s}, v10 offset:{LQ + s*256}")
    a("v_lshrrev_b32 v11, 5, v1"); a("v_lshlrev_b32 v11, 13, v11")
    a("v_and_b32 v12, 31, v1"); a("v_lshl_add_u32 v11, v12, 1, v11")
    a("s_lshl_b32 s4, s3, 14"); a("s_lshl_b32 s5, s59, 11"); a("s_add_u32 s4, s4, s5")
    a("s_lshl_b32 s5, s27, 6"); a("s_add_u32 s4, s4, s5")
    if OFF_Q: a(f"s_add_u32 s4, s4, {OFF_Q}")
    a("s_waitcnt lgkmcnt(0)")
    for st in (8, 4, 2, 1):
        for s in range(st):
            a(f"v_add_f32 v{vD + s}, v{vD + s}, v{vD + s + st}")
    a(f"v_mov_b32_dpp v12, v{vD} quad_perm:[1,0,3,2] row_mask:0xf bank_mask:0xf")
    a(f"v_cvt_pk_bf16_f32 v12, v{vD}, v12")
    a("s_mov_b32 exec_lo, 0x55555555"); a("s_mov_b32 exec_hi, 0x55555555")
    a(f"buffer_store_dword v12, v11, {SRD_WS}, s4 offen sc1")
    a("s_mov_b64 exec, -1")
    a("s_lshl_b32 s5, s3, 7")
    a("s_mov_b32 s4, 1")
    a("s_waitcnt vmcnt(0)")
    a("s_atomic_add s4, s[22:23], s5")
    a.cond_end()
    a.label("L_noq")
    stamp()

    a("v_and_b32 v10, 7, v1"); a("v_lshlrev_b32 v10, 8, v10")
    a("v_lshl_or_b32 v10, v7, 5, v10")
    a("v_bfe_u32 v11, v1, 3, 1"); a("v_lshl_or_b32 v10, v11, 4, v10")
    a("s_lshl_b32 s4, s3, 1"); a("s_add_u32 s4, s4, s72"); a("s_lshl_b32 s4, s4, 13")
    a("s_lshl_b32 s5, s59, 11"); a("s_add_u32 s58, s4, s5")
    if OFF_Q: a(f"s_add_u32 s58, s58, {OFF_Q}")
    a("s_lshl_b32 s5, s3, 7")
    a("v_mov_b32 v11, s5")
    while kq[0] < F1:
        kload()
    a.vmem("flag", "global_load_dword v12, v11, s[22:23] sc1")
    while kq[0] < F2:
        kload()
    a.wait_vm("flag")
    a("v_readfirstlane_b32 s4, v12")
    a("s_cmp_ge_u32 s4, 128")
    a("s_cbranch_scc1 L_qok")
    a.cond_begin()
    a(f"s_mov_b32 s63, {spin_max}")
    a.label("L_qspin")
    a("s_sleep 2")
    a("global_load_dword v12, v11, s[22:23] sc1")
    a("s_waitcnt vmcnt(0)")
    a("v_readfirstlane_b32 s4, v12")
    a("s_cmp_ge_u32 s4, 128")
    a("s_cbranch_scc1 L_qok")
    a("s_sub_u32 s63, s63, 1")
    a("s_cmp_lg_u32 s63, 0")
    a("s_cbranch_scc1 L_qspin")
    a.cond_end()
    a.label("L_qok")
    a.vmem("Q0", f"buffer_load_dwordx4 v[{vQ}:{vQ+3}], v10, {SRD_WS}, s58 offen sc1")
    a.vmem("Q1", f"buffer_load_dwordx4 v[{vQ+4}:{vQ+7}], v10, {SRD_WS}, s58 offen offset:128 sc1")
    while kq[0] < 64:
        kload()
    a("s_lshl_b32 s4, s59, 21"); a("s_lshl_b32 s5, s27, 16"); a("s_add_u32 s4, s4, s5")
    a("s_add_u32 s40, s16, s4"); a("s_addc_u32 s41, s17, 0"); a("s_mov_b32 s42, 0x10000"); a("s_mov_b32 s43, 0x20000")
    a("s_mov_b32 s68, 0x4000"); a("s_mov_b32 s69, 0x8000"); a("s_mov_b32 s70, 0xc000")
    a("v_lshlrev_b32 v4, 12, v7")
    a("v_lshl_or_b32 v4, v6, 9, v4")
    a("v_and_b32 v12, 15, v1"); a("v_lshl_or_b32 v4, v12, 4, v4")
    a.wait_vm("Q1")
    stamp()

    def qk_mfma(sg):
        D = vD + (sg % 4) * 4
        r = (2 * sg % 64) * 4
        a.wait_vm(f"K{2*sg+1}")
        a(f"v_mfma_f32_16x16x32_bf16 v[{D}:{D+3}], a[{r}:{r+3}], v[{vQ}:{vQ+3}], 0")
        a(f"v_mfma_f32_16x16x32_bf16 v[{D}:{D+3}], a[{r+4}:{r+7}], v[{vQ+4}:{vQ+7}], v[{D}:{D+3}]")
    def qk_fin(sg):
        D = vD + (sg % 4) * 4
        a(f"v_add_f32_dpp v{vS+sg}, v{D+1}, v{D} row_ror:8 row_mask:0xf bank_mask:0x3")
        a(f"v_add_f32_dpp v{vS+sg}, v{D+2}, v{D+3} row_ror:8 row_mask:0xf bank_mask:0xc")
    LAG = 3
    for sg in range(64):
        qk_mfma(sg)
        if sg < 32:
            kload(); kload()
        elif sg < 56:
            if sg % 3 == 2: vload()
        else:
            vload()
        if sg >= LAG:
            qk_fin(sg - LAG)
    for sg in range(64 - LAG, 64):
        qk_fin(sg)
    stamp()

    a(f"v_max3_f32 v12, v{vS}, v{vS+1}, v{vS+2}")
    for s in range(3, 63, 2):
        a(f"v_max3_f32 v12, v12, v{vS+s}, v{vS+s+1}")
    a(f"v_max_f32 v12, v12, v{vS+63}")
    a("v_and_b32 v10, 7, v1"); a("v_lshlrev_b32 v10, 6, v10")
    a("v_lshl_add_u32 v11, v6, 2, v7"); a("v_lshl_add_u32 v11, v11, 2, v10")
    a("v_max_f32_dpp v12, v12, v12 row_ror:8 row_mask:0xf bank_mask:0xf")
    a(f"ds_write_b32 v11, v12 offset:{LM}")
    vload(); vload()
    a("s_waitcnt lgkmcnt(0)")
    a("s_barrier")
    for j in range(4):
        a(f"ds_read_b128 v[{vD+4*j}:{vD+4*j+3}], v10 offset:{LM + 16*j}")
    vload(); vload()
    a("s_waitcnt lgkmcnt(0)")
    a(f"v_max3_f32 v12, v{vD}, v{vD+1}, v{vD+2}")
    for s in range(3, 15, 2):
        a(f"v_max3_f32 v12, v12, v{vD+s}, v{vD+s+1}")
    a(f"v_max_f32 v12, v12, v{vD+15}")
    a(f"v_mul_f32 v14, {SC}, v12")
    a("v_mov_b32 v15, 0")
    for s0 in range(0, 64, 4):
        for s in range(s0, s0 + 4):
            a(f"v_fma_f32 v{vS+s}, v{vS+s}, {SC}, -v14")
        for s in range(s0, s0 + 4):
            a(f"v_exp_f32 v{vS+s}, v{vS+s}")
        for s in range(s0, s0 + 4):
            a(f"v_add_f32 v15, v15, v{vS+s}")
        for s in range(s0, s0 + 4):
            a(f"v_mov_b32_dpp v{vD + s - s0}, v{vS+s} row_ror:8 row_mask:0xf bank_mask:0xf")
        for s in range(s0, s0 + 4):
            a(f"v_cvt_pk_bf16_f32 v{vS+s}, v{vS+s}, v{vD + s - s0}")
        if vq[0] < 32 and s0 % 8 == 4:
            vload()
    a("v_add_f32_dpp v15, v15, v15 row_ror:8 row_mask:0xf bank_mask:0xf")
    a(f"ds_write_b32 v11, v15 offset:{LL}")
    while vq[0] < 32:
        vload()
    a("s_waitcnt lgkmcnt(0)")
    a("s_barrier")
    a("s_cmp_lg_u32 s26, 0")
    a("s_cbranch_scc1 L_noml")
    a.cond_begin()
    for j in range(4):
        a(f"ds_read_b128 v[{vD+4*j}:{vD+4*j+3}], v10 offset:{LL + 16*j}")
    a("v_lshlrev_b32 v12, 3, v1")
    a("s_waitcnt lgkmcnt(0)")
    for st in (8, 4, 2, 1):
        for s in range(st):
            a(f"v_add_f32 v{vD + s}, v{vD + s}, v{vD + s + st}")
    a(f"v_mov_b32 v15, v{vD}")
    a("s_mov_b64 exec, 0xff")
    a(f"buffer_store_dwordx2 v[14:15], v12, {SRD_WS}, s76 offen sc1")
    a("s_mov_b64 exec, -1")
    a.cond_end()
    a.label("L_noml")
    stamp()

    acc = [f"a[{4*t}:{4*t+3}]" for t in range(8)]
    a("v_and_b32 v8, 1, v1"); a("v_lshlrev_b32 v8, 6, v8")
    a("v_bfe_u32 v9, v1, 1, 3"); a("v_add_u32 v8, v8, v9")
    a("s_lshl_b32 s4, s3, 7"); a("s_lshl_b32 s5, s59, 4"); a("s_add_u32 s4, s4, s5")
    a("v_add_u32 v8, s4, v8")
    a("v_lshlrev_b32 v9, 6, v8")
    a("v_lshlrev_b32 v8, 12, v8"); a("v_lshl_or_b32 v8, v7, 5, v8")
    a("s_lshr_b32 s4, s27, 2"); a("s_lshl_b32 s4, s4, 3"); a(f"s_add_u32 s77, s4, {OFF_ML}")
    a("s_lshl_b32 s4, s27, 7"); a(f"s_add_u32 s58, s4, {OFF_O}"); a("s_add_u32 s71, s58, 0x8000")
    vML = vX
    def ml_loads(track):
        t0 = f"buffer_load_dwordx2 v[{vML}:{vML+1}], v9, {SRD_WS}, s77 offen sc1"
        t1 = f"buffer_load_dwordx2 v[{vML+2}:{vML+3}], v9, {SRD_WS}, s77 offen offset:512 sc1"
        if track:
            a.vmem("ml0", t0); a.vmem("ml1", t1)
        else:
            a(t0); a(t1)
    def ml_check():
        a(f"v_max3_u32 v12, v{vML}, v{vML+1}, v{vML+2}")
        a(f"v_max_u32 v12, v12, v{vML+3}")
        a("v_cmp_eq_u32 vcc, -1, v12")
    for T in range(16):
        a.wait_vm(f"V{8*T+7}")
        tile(vR + (T % 4) * 32, f"v[{vS+4*T}:{vS+4*T+3}]", acc, T == 0)
        if T + 4 < 18:
            for _ in range(8):
                vload()
        if T == MLT:
            ml_loads(True)
        if T == MLC:
            a.wait_vm("ml1")
            ml_check()
            a("s_cbranch_vccz L_mlok")
            a.cond_begin()
            a(f"s_mov_b32 s63, {spin_max}")
            a.label("L_mlspin")
            a("s_sleep 2")
            ml_loads(False)
            a("s_waitcnt vmcnt(0)")
            ml_check()
            a("s_cbranch_vccz L_mlok")
            a("s_sub_u32 s63, s63, 1"); a("s_cmp_lg_u32 s63, 0"); a("s_cbranch_scc1 L_mlspin")
            a.cond_end()
            a.label("L_mlok")
            a(f"v_max_f32 v12, v{vML}, v{vML+2}")
            for rot in (2, 4, 8):
                a(f"v_max_f32_dpp v12, v12, v12 row_ror:{rot} row_mask:0xf bank_mask:0xf")
            a(f"v_sub_f32 v14, v{vML}, v12"); a(f"v_sub_f32 v15, v{vML+2}, v12")
            a("v_exp_f32 v14, v14"); a("v_exp_f32 v15, v15")
            a(f"v_mul_f32 v12, v14, v{vML+1}")
            a(f"v_fmac_f32 v12, v15, v{vML+3}")
            for rot in (2, 4, 8):
                a(f"v_add_f32_dpp v12, v12, v12 row_ror:{rot} row_mask:0xf bank_mask:0xf")
            a("v_rcp_f32 v12, v12")
            a("v_mul_f32 v14, v14, v12"); a("v_mul_f32 v15, v15, v12")
        if T == 12:
            a("v_and_b32 v10, 7, v1"); a(f"v_mul_u32_u24 v10, {LO_H}, v10")
            a("v_lshl_add_u32 v10, v7, 7, v10")
            a(f"v_mul_u32_u24 v11, {LO_W}, v6"); a("v_add_u32 v10, v10, v11")
            a("v_lshrrev_b32 v11, 5, v0"); a(f"v_mul_u32_u24 v11, {LO_H}, v11")
            a("v_and_b32 v12, 31, v0"); a("v_lshl_add_u32 v11, v12, 4, v11")
            a("v_lshlrev_b32 v13, 4, v0")
            a("v_lshlrev_b32 v5, 11, v6"); a("v_lshl_or_b32 v5, v7, 5, v5")
            a("v_and_b32 v12, 1, v1"); a("v_lshl_or_b32 v5, v12, 4, v5")
    stamp()

    a("s_mov_b32 exec_lo, 0x00ff00ff"); a("s_mov_b32 exec_hi, 0x00ff00ff")
    for t in range(8):
        a(f"ds_write_b128 v10, {acc[t]} offset:{LO + t*16}")
    a("s_mov_b64 exec, -1")
    a("s_waitcnt lgkmcnt(0)")
    a("s_barrier")
    for w in range(4):
        a(f"ds_read_b128 v[{vD+4*w}:{vD+4*w+3}], v11 offset:{LO + w*LO_W}")
    a("s_waitcnt lgkmcnt(0)")
    for r in range(4):
        a(f"v_add_f32 v{vD+r}, v{vD+r}, v{vD+4+r}")
    for r in range(4):
        a(f"v_add_f32 v{vD+8+r}, v{vD+8+r}, v{vD+12+r}")
    for r in range(4):
        a(f"v_add_f32 v{vD+r}, v{vD+r}, v{vD+8+r}")
    a.vmem("Opub", f"buffer_store_dwordx4 v[{vD}:{vD+3}], v13, {SRD_WS}, s73 offen sc1")
    a.wait_vm("V143")
    for tau in range(2):
        slot0 = vR + tau * 32
        for t in range(8):
            for jj in range(4):
                lo = slot0 + (2 * jj) * 4 + (t >> 1)
                hi = slot0 + (2 * jj + 1) * 4 + (t >> 1)
                a(f"v_perm_b32 v{vS + (tau*8+t)*4 + jj}, v{hi}, v{lo}, {SEL_HI if t & 1 else SEL_LO}")
    stamp()
    G = vF - 8
    a(f"s_mov_b32 s63, {spin_max}")
    a.label("L_h1")
    a(f"buffer_load_dwordx4 v[{G}:{G+3}], v8, {SRD_WS}, s58 offen sc1")
    a(f"buffer_load_dwordx4 v[{G+4}:{G+7}], v8, {SRD_WS}, s58 offen offset:16 sc1")
    a(f"buffer_load_dwordx4 v[{G+8}:{G+11}], v8, {SRD_WS}, s71 offen sc1")
    a(f"buffer_load_dwordx4 v[{G+12}:{G+15}], v8, {SRD_WS}, s71 offen offset:16 sc1")
    a("s_sub_u32 s63, s63, 1")
    a("s_waitcnt vmcnt(0)")
    a(f"v_max3_u32 v12, v{G}, v{G+1}, v{G+2}")
    for s in range(3, 15, 2):
        a(f"v_max3_u32 v12, v12, v{G+s}, v{G+s+1}")
    a(f"v_max_u32 v12, v12, v{G+15}")
    a("v_cmp_eq_u32 vcc, -1, v12")
    a("s_cbranch_vccz L_h1ok")
    a("s_mov_b64 exec, vcc")
    a("s_cmp_lg_u32 s63, 0")
    a("s_cbranch_scc1 L_h1")
    a.label("L_h1ok")
    a("s_mov_b64 exec, -1")
    a.vm_done = len(a.vm)
    for i in range(8):
        a(f"v_mul_f32 v{G+i}, v14, v{G+i}")
    for i in range(8):
        a(f"v_fmac_f32 v{G+i}, v15, v{G+8+i}")
    for rot in (2, 4, 8):
        for i in range(8):
            a(f"v_add_f32_dpp v{G+i}, v{G+i}, v{G+i} row_ror:{rot} row_mask:0xf bank_mask:0xf")
    for jj in range(4):
        a(f"v_cvt_pk_bf16_f32 v{vQ+jj}, v{G+2*jj}, v{G+2*jj+1}")
    stamp()
    vP = vR + 64
    a("s_mov_b32 s64, 0x00030003"); a("s_mov_b32 s65, 0x00030003")
    for u in range(16):
        a(f"v_mfma_f32_16x16x32_bf16 v[{vP+4*u}:{vP+4*u+3}], v[{vS+4*u}:{vS+4*u+3}], v[{vQ}:{vQ+3}], 0")
    a("s_mov_b64 exec, s[64:65]")
    for u in range(16):
        a(f"buffer_store_dwordx4 v[{vP+4*u}:{vP+4*u+3}], v5, {SRD_WS}, s74 offen offset:{u*128} sc1")
    a("s_mov_b64 exec, -1")
    a("s_cmp_lg_u32 s26, 0")
    a("s_cbranch_scc1 L_end")
    a("v_lshrrev_b32 v8, 2, v1"); a("v_lshlrev_b32 v8, 13, v8")
    a("v_and_b32 v9, 3, v1"); a("v_lshl_or_b32 v8, v9, 4, v8")
    a("s_lshl_b32 s4, s3, 20"); a("s_and_b32 s5, s2, 127"); a("s_lshl_b32 s6, s5, 6")
    a("s_add_u32 s4, s4, s6"); a(f"s_add_u32 s64, s4, {OFF_P}")
    for it in range(1, 8):
        a(f"s_add_u32 s{64+it}, s{63+it}, 0x20000")
    a("s_lshr_b32 s6, s5, 4"); a("s_lshl_b32 s6, s6, 7")
    a("s_and_b32 s7, s5, 1"); a("s_lshl_b32 s7, s7, 6"); a("s_add_u32 s6, s6, s7")
    a("s_bfe_u32 s7, s5, 0x30001"); a("s_add_u32 s6, s6, s7")
    a("s_lshl_b32 s7, s3, 10"); a("s_add_u32 s6, s6, s7")
    a("s_lshl_b32 s6, s6, 1")
    a("v_and_b32 v9, 1, v1"); a("v_lshlrev_b32 v9, 12, v9")
    a("v_bfe_u32 v10, v1, 1, 1"); a("v_lshl_or_b32 v9, v10, 6, v9")
    a("v_bfe_u32 v10, v1, 4, 1"); a("v_lshl_or_b32 v9, v10, 5, v9")
    a("v_bfe_u32 v10, v1, 5, 1"); a("v_lshl_or_b32 v9, v10, 4, v9")
    a("s_mov_b32 s52, s20"); a("s_mov_b32 s53, s21"); a("s_mov_b32 s54, 8192"); a("s_mov_b32 s55, 0x20000")
    H = vR
    a(f"s_mov_b32 s63, {spin_max}")
    a.label("L_h2")
    for it in range(8):
        a(f"buffer_load_dwordx4 v[{H+4*it}:{H+4*it+3}], v8, {SRD_WS}, s{64+it} offen sc1")
    a("s_sub_u32 s63, s63, 1")
    a("s_waitcnt vmcnt(0)")
    a(f"v_max3_u32 v12, v{H}, v{H+1}, v{H+2}")
    for s in range(3, 31, 2):
        a(f"v_max3_u32 v12, v12, v{H+s}, v{H+s+1}")
    a(f"v_max_u32 v12, v12, v{H+31}")
    a("v_cmp_eq_u32 vcc, -1, v12")
    a("s_cbranch_vccz L_h2ok")
    a("s_mov_b64 exec, vcc")
    a("s_cmp_lg_u32 s63, 0")
    a("s_cbranch_scc1 L_h2")
    a.label("L_h2ok")
    a("s_mov_b64 exec, -1")
    for st in (16, 8, 4):
        for s in range(st):
            a(f"v_add_f32 v{H+s}, v{H+s}, v{H+s+st}")
    a(f"v_permlane32_swap_b32 v{H}, v{H+1}")
    a(f"v_permlane32_swap_b32 v{H+2}, v{H+3}")
    a(f"v_add_f32 v{H}, v{H}, v{H+1}")
    a(f"v_add_f32 v{H+2}, v{H+2}, v{H+3}")
    a(f"v_permlane16_swap_b32 v{H}, v{H+2}")
    a(f"v_add_f32 v{H}, v{H}, v{H+2}")
    a(f"v_add_f32_dpp v{H}, v{H}, v{H} row_ror:4 row_mask:0xf bank_mask:0xf")
    a(f"v_add_f32_dpp v{H}, v{H}, v{H} row_ror:8 row_mask:0xf bank_mask:0xf")
    a(f"v_cvt_pk_bf16_f32 v{H}, v{H}, v{H}")
    a("s_mov_b32 exec_lo, 0x000f000f"); a("s_mov_b32 exec_hi, 0x000f000f")
    a(f"buffer_store_short v{H}, v9, {SRD_OUT}, s6 offen")
    if stamps:
        stamp()
        a("s_mov_b64 exec, 1")
        a("s_waitcnt lgkmcnt(0)")
        a(f"s_add_u32 s24, s24, {STAMP_OFF}"); a("s_addc_u32 s25, s25, 0")
        a("s_lshl_b32 s4, s2, 6"); a("v_mov_b32 v1, s4")
        a("s_getreg_b32 s5, hwreg(HW_REG_XCC_ID)")
        vals = ["s78", f"s{78 + 2*(nst[0]-1)}", "s5", "s63"] + [f"s{78+2*i}" for i in range(nst[0])]
        for i, sv in enumerate(vals):
            a(f"v_mov_b32 v2, {sv}")
            a(f"global_store_dword v1, v2, s[24:25] offset:{4*i}")
    a.label("L_end")
    a("s_endpgm")
    a.raw('.section .rodata,"a"'); a.raw(".p2align 6"); a.raw(f".amdhsa_kernel {NAME}")
    a.raw("  .amdhsa_next_free_vgpr 512"); a.raw("  .amdhsa_next_free_sgpr 102"); a.raw("  .amdhsa_accum_offset 256")
    a.raw("  .amdhsa_group_segment_fixed_size 0"); a.raw("  .amdhsa_kernarg_size 104"); a.raw("  .amdhsa_user_sgpr_count 2")
    a.raw("  .amdhsa_user_sgpr_kernarg_segment_ptr 1"); a.raw("  .amdhsa_system_sgpr_workgroup_id_x 1")
    a.raw("  .amdhsa_float_denorm_mode_32 3")
    a.raw(".end_amdhsa_kernel")
    return a.text()

if __name__ == "__main__":
    open("k1.s", "w").write(gen())
    open("k1s.s", "w").write(gen(stamps=True))
```
